```python
import torch

def _softmax(x, axis=-1):
    return torch.softmax(x, dim=axis)
def _gelu(x):
    return torch.nn.functional.gelu(x, approximate="tanh")
def _silu(x):
    return torch.nn.functional.silu(x)
def _sigmoid(x):
    return torch.sigmoid(x)
def _layernorm(x, axis=-1, eps=1e-5):
    m = x.mean(dim=axis, keepdim=True)
    v = x.var(dim=axis, keepdim=True, unbiased=False)
    return (x - m) / torch.sqrt(v + eps)
def _scatter_add(tgt, idx, src, axis=0):
    return tgt.clone().index_add_(axis, idx, src)
def _segment_sum(src, seg, n):
    out = torch.zeros((n,) + src.shape[1:], dtype=src.dtype)
    return out.index_add_(0, seg, src)
def _pad(x, pw):
    flat = tuple(v for pair in reversed(pw) for v in pair)
    return torch.nn.functional.pad(x, flat)

kernel_name = 'gather_scatter__edge_featured_mpnn_gatedgcn__graph'

def setup_inputs():

    _w = (lambda a: (lambda t: t.to(torch.bfloat16) if t.is_floating_point() else t)(torch.as_tensor(a)))
    N, deg, D, De = 10000, 32, 128, max(0, 1)
    E = N * deg
    return {
        "x": _w((lambda *s: torch.randn(*s, dtype=torch.bfloat16) * 0.4)(N, D)),
        "e_attr": _w((lambda *s: torch.randn(*s, dtype=torch.bfloat16) * 1.6)(E, De)),
        "src": _w((lambda lo, hi, *s: torch.randint(lo, hi, s))(0, N, E).to(torch.int64)),
        "dst": _w((lambda lo, hi, *s: torch.randint(lo, hi, s))(0, N, E).to(torch.int64)),
        "w_a": _w((lambda *s: torch.randn(*s, dtype=torch.bfloat16) * 0.4)(D, D)),
        "w_b": _w((lambda *s: torch.randn(*s, dtype=torch.bfloat16) * 0.4)(D, D)),
        "w_c": _w((lambda *s: torch.randn(*s, dtype=torch.bfloat16) * 1.6)(De, D)),
        "w_u": _w((lambda *s: torch.randn(*s, dtype=torch.bfloat16) * 0.05)(D, D)),
        "w_v": _w((lambda *s: torch.randn(*s, dtype=torch.bfloat16) * 0.05)(D, D)),
    }

def reference(x, e_attr, src, dst, w_a, w_b, w_c, w_u, w_v):
    N, D = x.shape
    hv = x @ w_v
    g = x[dst] @ w_a + x[src] @ w_b + e_attr @ w_c
    eta = _sigmoid(g)
    denom = _segment_sum(eta, dst, N) + 1e-6
    eta_n = eta / denom[dst]
    agg = _segment_sum(eta_n * hv[src], dst, N)
    z = x @ w_u + agg
    relu_z = torch.where(z > 0, z, 0 * z)
    return x + relu_z
```

```python
import sys

N = 10000
E = 320000
NC = 64
CH = E // NC
RB = 64
NGB = (N + RB - 1) // RB
NROWS = NGB * RB
T_OFF = 0
A_OFF = 0x500000
U_OFF = 0xA00000
OFF_OFF = 0xF00000
S_OFF = 0x1100000
WC_OFF = 0x1300000
WS_USED = 0x1400000
DUMMY_ROW = NROWS
NEG_LOG2E = 0xbfb8aa3b

class Asm:
    def __init__(self):
        self.lines = []
    def __call__(self, s):
        for l in s.strip("\n").split("\n"):
            l = l.strip()
            if not l: continue
            if l.endswith(":") or l.startswith("."):
                self.lines.append(l)
            else:
                self.lines.append("    " + l)
    def text(self):
        return "\n".join(self.lines) + "\n"

def kernel_desc(name, vgpr, sgpr):
    acc = (vgpr + 3) // 4 * 4
    return f""".amdhsa_kernel {name}
  .amdhsa_next_free_vgpr {vgpr}
  .amdhsa_next_free_sgpr {sgpr}
  .amdhsa_accum_offset {acc}
  .amdhsa_group_segment_fixed_size 0
  .amdhsa_kernarg_size 96
  .amdhsa_user_sgpr_count 2
  .amdhsa_user_sgpr_kernarg_segment_ptr 1
  .amdhsa_system_sgpr_workgroup_id_x 1
.end_amdhsa_kernel
"""

def gen_k1(a):
    a(f"""
.globl prep_kernel
.p2align 8
.type prep_kernel,@function
prep_kernel:
    s_load_dwordx2 s[8:9], s[0:1], 88        ; ws
    s_cmp_ge_u32 s2, {NC + NGB}
    s_cbranch_scc1 K1_exit
    v_and_b32 v1, 63, v0                     ; lane
    v_lshrrev_b32 v2, 6, v0
    s_nop 0
    v_readfirstlane_b32 s3, v2
    s_cmp_ge_u32 s2, {NC}
    s_cbranch_scc1 K1_gemm
""")
    a(f"""
    s_load_dwordx2 s[4:5], s[0:1], 8         ; e_attr
    s_load_dwordx2 s[6:7], s[0:1], 16        ; src
    s_load_dwordx2 s[10:11], s[0:1], 24      ; dst
    v_mov_b32 v4, 0
    v_mov_b32 v5, 0
    v_mov_b32 v6, 0
    v_mov_b32 v7, 0
    v_lshlrev_b32 v3, 4, v0
    ds_write_b128 v3, v[4:7]
    ds_write_b128 v3, v[4:7] offset:8192
    ds_write_b128 v3, v[4:7] offset:16384
    ds_write_b128 v3, v[4:7] offset:24576
    ds_write_b128 v3, v[4:7] offset:32768
    s_waitcnt lgkmcnt(0)
    s_mov_b32 s12, s10
    s_and_b32 s13, s11, 0xffff
    s_mov_b32 s14, {E*4}
    s_mov_b32 s15, 0x00020000
    s_mov_b32 s16, s6
    s_and_b32 s17, s7, 0xffff
    s_mov_b32 s18, {E*4}
    s_mov_b32 s19, 0x00020000
    s_mov_b32 s20, s4
    s_and_b32 s21, s5, 0xffff
    s_mov_b32 s22, {E*2}
    s_mov_b32 s23, 0x00020000
    s_mov_b32 s24, s8
    s_and_b32 s25, s9, 0xffff
    s_mov_b32 s26, {WS_USED}
    s_mov_b32 s27, 0x00020000
    s_mul_i32 s28, s2, {CH*4}
    s_mul_i32 s29, s2, {CH*2}
    v_lshlrev_b32 v3, 2, v0                  ; tid*4
    v_lshlrev_b32 v8, 1, v0                  ; tid*2
""")
    NK = 10
    last_lim = CH - 512 * (NK - 1)
    for k in range(NK):
        if k == NK - 1:
            a(f"""
    v_cmp_gt_u32 vcc, {last_lim}, v0
    s_mov_b64 s[60:61], vcc
    s_and_saveexec_b64 s[30:31], vcc
""")
        a(f"s_add_u32 s32, s28, {k*2048}")
        a(f"buffer_load_dword v{10+k}, v3, s[12:15], s32 offen")
    a("s_mov_b64 exec, s[30:31]")
    for k in range(NK):
        if k == NK - 1:
            a("s_and_saveexec_b64 s[30:31], s[60:61]")
        a(f"s_add_u32 s32, s28, {k*2048}")
        a(f"buffer_load_dword v{20+k}, v3, s[16:19], s32 offen")
        a(f"s_add_u32 s33, s29, {k*1024}")
        a(f"buffer_load_ushort v{30+k}, v8, s[20:23], s33 offen")
    a("s_mov_b64 exec, s[30:31]")
    a("s_barrier")
    a("v_mov_b32 v9, 1")
    a(f"s_waitcnt vmcnt({2*NK})")
    for k in range(NK):
        if k == NK - 1:
            a("s_and_saveexec_b64 s[30:31], s[60:61]")
        a(f"v_lshlrev_b32 v{10+k}, 2, v{10+k}")
        a(f"ds_add_rtn_u32 v{40+k}, v{10+k}, v9")
    a("s_mov_b64 exec, s[30:31]")
    a("s_waitcnt lgkmcnt(0)")
    a("s_barrier")
    a(f"""
    v_mul_u32_u24 v50, 96, v0
    v_cmp_gt_u32 vcc, 417, v0
    s_mov_b64 s[34:35], vcc
    v_mov_b32 v76, 0
    s_and_saveexec_b64 s[30:31], s[34:35]
""")
    for j in range(6):
        a(f"ds_read_b128 v[{52+4*j}:{55+4*j}], v50 offset:{16*j}")
    a("s_waitcnt lgkmcnt(0)")
    for j in range(24):
        r = 52 + j
        a(f"v_add_u32 v77, v76, v{r}")
        a(f"v_mov_b32 v{r}, v76")
        a(f"v_mov_b32 v76, v77")
    a("s_mov_b64 exec, s[30:31]")
    a("""
    v_mov_b32 v78, v76
    s_nop 1
    v_add_u32_dpp v78, v78, v78 row_shr:1 row_mask:0xf bank_mask:0xf bound_ctrl:0
    s_nop 1
    v_add_u32_dpp v78, v78, v78 row_shr:2 row_mask:0xf bank_mask:0xf bound_ctrl:0
    s_nop 1
    v_add_u32_dpp v78, v78, v78 row_shr:4 row_mask:0xf bank_mask:0xf bound_ctrl:0
    s_nop 1
    v_add_u32_dpp v78, v78, v78 row_shr:8 row_mask:0xf bank_mask:0xf bound_ctrl:0
    s_nop 1
    v_add_u32_dpp v78, v78, v78 row_bcast:15 row_mask:0xa bank_mask:0xf
    s_nop 1
    v_add_u32_dpp v78, v78, v78 row_bcast:31 row_mask:0xc bank_mask:0xf
    s_nop 1
    v_readlane_b32 s36, v78, 63
    v_sub_u32 v78, v78, v76
    s_lshl_b32 s37, s3, 2
    s_add_u32 s37, s37, 61440
    v_mov_b32 v79, s37
    v_mov_b32 v80, s36
    ds_write_b32 v79, v80
    s_waitcnt lgkmcnt(0)
    s_barrier
    v_mov_b32 v79, 61440
    ds_read_b128 v[80:83], v79
    ds_read_b128 v[84:87], v79 offset:16
    s_waitcnt lgkmcnt(0)
""")
    a("v_mov_b32 v79, 0")
    for w in range(7):
        a(f"s_cmp_gt_u32 s3, {w}")
        a(f"s_cselect_b32 s37, 1, 0")
        a(f"v_mul_u32_u24 v88, s37, v{80+w}")
        a(f"v_add_u32 v79, v79, v88")
    a("v_add_u32 v78, v78, v79")
    a("s_and_saveexec_b64 s[30:31], s[34:35]")
    for j in range(24):
        a(f"v_add_u32 v{52+j}, v78, v{52+j}")
    for j in range(6):
        a(f"ds_write_b128 v50, v[{52+4*j}:{55+4*j}] offset:{16*j}")
    for j in range(12):
        a(f"v_lshl_or_b32 v{88+j}, v{53+2*j}, 16, v{52+2*j}")
    a(f"""
    v_mul_u32_u24 v51, 3072, v0
    s_lshl_b32 s37, s2, 4
    s_add_u32 s37, s37, {OFF_OFF}
    buffer_store_dwordx4 v[88:91], v51, s[24:27], s37 offen
    buffer_store_dwordx4 v[92:95], v51, s[24:27], s37 offen offset:1024
    buffer_store_dwordx4 v[96:99], v51, s[24:27], s37 offen offset:2048
    s_mov_b64 exec, s[30:31]
    s_waitcnt lgkmcnt(0)
    s_barrier
""")
    for k in range(NK):
        if k == NK - 1:
            a("s_and_saveexec_b64 s[30:31], s[60:61]")
        a(f"ds_read_b32 v{52+k}, v{10+k}")
    a("s_mov_b64 exec, s[30:31]")
    a("s_waitcnt vmcnt(3) lgkmcnt(0)")
    for k in range(NK):
        if k == NK - 1:
            a("s_and_saveexec_b64 s[30:31], s[60:61]")
        a(f"v_add_u32 v{52+k}, v{52+k}, v{40+k}")
        a(f"v_lshlrev_b32 v{52+k}, 2, v{52+k}")
        a(f"v_lshl_or_b32 v{20+k}, v{30+k}, 16, v{20+k}")
        a(f"ds_write_b32 v{52+k}, v{20+k} offset:40960")
    a("s_mov_b64 exec, s[30:31]")
    a("s_waitcnt lgkmcnt(0)")
    a("s_barrier")
    a(f"""
    v_lshlrev_b32 v3, 4, v0
    ds_read_b128 v[52:55], v3 offset:40960
    ds_read_b128 v[56:59], v3 offset:49152
    v_cmp_gt_u32 vcc, 226, v0
    s_and_saveexec_b64 s[30:31], vcc
    ds_read_b128 v[60:63], v3 offset:57344
    s_mov_b64 exec, s[30:31]
    s_add_u32 s37, s28, {S_OFF}
    s_add_u32 s38, s37, 8192
    s_add_u32 s39, s37, 16384
    s_waitcnt lgkmcnt(0)
    buffer_store_dwordx4 v[52:55], v3, s[24:27], s37 offen
    buffer_store_dwordx4 v[56:59], v3, s[24:27], s38 offen
    s_and_saveexec_b64 s[30:31], vcc
    buffer_store_dwordx4 v[60:63], v3, s[24:27], s39 offen
    s_endpgm
""")
    a(f"""
K1_gemm:
    s_sub_u32 s2, s2, {NC}                   ; block b
    s_load_dwordx2 s[4:5], s[0:1], 0         ; x
    s_load_dwordx4 s[40:43], s[0:1], 32      ; w_a, w_b
    s_load_dwordx4 s[44:47], s[0:1], 48      ; w_c, w_u
    s_load_dwordx2 s[48:49], s[0:1], 64      ; w_v
    s_lshr_b32 s28, s3, 2                    ; pair
    s_and_b32 s29, s3, 3                     ; q
    s_waitcnt lgkmcnt(0)
    s_cmp_eq_u32 s28, 0
    s_cselect_b32 s12, s42, s40
    s_cselect_b32 s13, s43, s41
    s_cselect_b32 s16, s48, s46
    s_cselect_b32 s17, s49, s47
    s_and_b32 s13, s13, 0xffff
    s_mov_b32 s14, 32768
    s_mov_b32 s15, 0x00020000
    s_and_b32 s17, s17, 0xffff
    s_mov_b32 s18, 32768
    s_mov_b32 s19, 0x00020000
    s_mov_b32 s20, s4
    s_and_b32 s21, s5, 0xffff
    s_mov_b32 s22, {N*256}
    s_mov_b32 s23, 0x00020000
    s_mov_b32 s24, s8
    s_and_b32 s25, s9, 0xffff
    s_mov_b32 s26, {WS_USED}
    s_mov_b32 s27, 0x00020000
    v_lshrrev_b32 v3, 2, v1
    v_lshlrev_b32 v3, 8, v3
    v_and_b32 v4, 3, v1
    v_lshlrev_b32 v4, 4, v4
    v_add_u32 v3, v3, v4
    s_lshl_b32 s30, s29, 6
    v_add_u32 v3, s30, v3
""")
    for i in range(8):
        a(f"s_movk_i32 s31, {i*4096}" if i*4096 < 32768 else f"s_mov_b32 s31, {i*4096}")
        a(f"buffer_load_dwordx4 v[{64+4*i}:{67+4*i}], v3, s[12:15], s31 offen")
        a(f"buffer_load_dwordx4 v[{96+4*i}:{99+4*i}], v3, s[16:19], s31 offen")
    a(f"""
    v_and_b32 v5, 15, v1
    v_lshrrev_b32 v6, 4, v1                  ; g
    v_lshlrev_b32 v7, 8, v5
    v_lshl_add_u32 v7, v6, 4, v7
    s_lshl_b32 s32, s2, 14
""")
    for t in range(4):
        a(f"s_add_u32 s33, s32, {t*4096}")
        for s in range(4):
            a(f"buffer_load_dwordx4 v[{128+16*t+4*s}:{131+16*t+4*s}], v7, s[20:23], s33 offen offset:{s*64}")
    a(f"""
    s_lshl_b32 s34, s3, 14
    v_lshlrev_b32 v8, 4, v1
    v_add_u32 v8, s34, v8
    v_lshrrev_b32 v9, 2, v1
    v_and_b32 v9, 3, v9
    v_lshl_add_u32 v9, v6, 3, v9
    v_lshlrev_b32 v9, 6, v9
    v_and_b32 v10, 3, v1
    v_lshl_add_u32 v9, v10, 3, v9
    v_add_u32 v9, s34, v9
""")
    for r in range(192, 256):
        a(f"v_mov_b32 v{r}, 0")
    for i in range(8):
        a(f"s_waitcnt vmcnt({16 + 14 - 2*i})")
        a(f"ds_write_b128 v8, v[{64+4*i}:{67+4*i}] offset:{i*1024}")
        a(f"ds_write_b128 v8, v[{96+4*i}:{99+4*i}] offset:{8192+i*1024}")
    a("s_waitcnt lgkmcnt(0)")
    for M in range(2):
        for ft in range(2):
            for s in range(4):
                r = 64 + ((M*2+ft)*4+s)*4
                for hh in range(2):
                    off = M*8192 + s*2048 + hh*256 + ft*32
                    a(f"ds_read_b64_tr_b16 v[{r+2*hh}:{r+2*hh+1}], v9 offset:{off}")
    a(f"""
    v_lshlrev_b32 v11, 9, v5
    v_lshl_add_u32 v11, v6, 4, v11
    s_lshl_b32 s30, s29, 7
    v_add_u32 v11, s30, v11
    s_lshl_b32 s35, s2, 15                   ; b*32768
    s_mov_b32 s36, {NEG_LOG2E:#x}
    s_waitcnt lgkmcnt(0)
""")
    for t in range(4):
        a(f"s_waitcnt vmcnt({12 - 4*t})")
        for s in range(4):
            for M in range(2):
                for ft in range(2):
                    acc = 192 + 16*t + (M*2+ft)*4
                    af = 64 + ((M*2+ft)*4+s)*4
                    xf = 128 + 16*t + 4*s
                    a(f"v_mfma_f32_16x16x32_bf16 v[{acc}:{acc+3}], v[{af}:{af+3}], v[{xf}:{xf+3}], v[{acc}:{acc+3}]")
    a("s_nop 7")
    a("s_nop 1")
    a("s_cmp_eq_u32 s28, 0")
    a("s_cbranch_scc0 K1_gemm_ep1")
    a("s_mov_b32 s37, 0x7fffffff")
    a("s_mov_b32 s38, 0x80000000")
    for t in range(4):
        a(f"s_add_u32 s33, s35, {T_OFF + t*8192}")
        for ft in range(2):
            accb = 192 + 16*t + ft*4
            accv = 192 + 16*t + (2+ft)*4
            o = 12 + 4*((t*2+ft) % 4)
            a(f"v_cvt_pk_bf16_f32 v28, v{accv}, v{accv+1}")
            a(f"v_cvt_pk_bf16_f32 v29, v{accv+2}, v{accv+3}")
            for r in range(4):
                lo = 30 + r
                if r % 2 == 0:
                    a(f"v_and_b32 v{lo}, 0xffff, v{28 + r//2}")
                else:
                    a(f"v_lshrrev_b32 v{lo}, 16, v{28 + r//2}")
                b = accb + r
                a(f"v_mul_f32 v{b}, s36, v{b}")
                a(f"v_and_b32 v34, 0x7fffffff, v{b}")
                a(f"v_add_u32 v34, 0x8000, v34")
                a(f"v_max_u32 v34, v34, v{lo}")
                a(f"v_sub_u32 v34, v34, v{lo}")
                a(f"v_and_b32 v34, 0xffff0000, v34")
                a(f"v_and_b32 v35, 0x80000000, v{b}")
                a(f"v_or3_b32 v{o+r}, v34, v35, v{lo}")
            a(f"buffer_store_dwordx4 v[{o}:{o+3}], v11, s[24:27], s33 offen offset:{ft*64}")
    a(f"""
    s_cmp_lg_u32 s2, 0
    s_cbranch_scc1 K1_exit
    s_cmp_lg_u32 s3, 0
    s_cbranch_scc1 K1_exit
    s_mov_b32 s12, s44
    s_and_b32 s13, s45, 0xffff
    s_mov_b32 s14, 256
    s_mov_b32 s15, 0x00020000
    v_lshlrev_b32 v3, 2, v1
    buffer_load_dword v4, v3, s[12:15], 0 offen
    v_mov_b32 v6, 0x7f000000
    v_mov_b32 v7, 0x7f000000
    v_lshlrev_b32 v8, 3, v1
    s_mov_b32 s33, {T_OFF + DUMMY_ROW*512}
    buffer_store_dwordx2 v[6:7], v8, s[24:27], s33 offen
    s_waitcnt vmcnt(1)
    v_lshlrev_b32 v12, 16, v4
    v_and_b32 v13, 0xffff0000, v4
    v_mul_f32 v12, s36, v12
    v_mul_f32 v13, s36, v13
    s_mov_b32 s33, {WC_OFF}
    buffer_store_dwordx2 v[12:13], v8, s[24:27], s33 offen
    s_endpgm
K1_gemm_ep1:
""")
    for t in range(4):
        a(f"s_add_u32 s33, s35, {A_OFF + t*8192}")
        a(f"s_add_u32 s34, s35, {U_OFF + t*8192}")
        for ft in range(2):
            acca = 192 + 16*t + ft*4
            accu = 192 + 16*t + (2+ft)*4
            for r in range(4):
                a(f"v_mul_f32 v{acca+r}, s36, v{acca+r}")
            a(f"buffer_store_dwordx4 v[{acca}:{acca+3}], v11, s[24:27], s33 offen offset:{ft*64}")
            a(f"buffer_store_dwordx4 v[{accu}:{accu+3}], v11, s[24:27], s34 offen offset:{ft*64}")
    a("""
K1_exit:
    s_endpgm
""")

LIST_BYTES = 2112
def gen_k2(a):
    D = lambda j: 24 + 4*j
    P = lambda j: 40 + 2*j
    a(f"""
.globl agg_kernel
.p2align 8
.type agg_kernel,@function
agg_kernel:
    s_load_dwordx2 s[4:5], s[0:1], 0         ; x
    s_load_dwordx2 s[6:7], s[0:1], 72        ; out
    s_load_dwordx2 s[8:9], s[0:1], 88        ; ws
    v_lshrrev_b32 v2, 6, v0
    v_and_b32 v1, 63, v0
    v_readfirstlane_b32 s3, v2
    s_lshl_b32 s24, s2, 2
    s_add_u32 s24, s24, s3                   ; node
    s_cmp_ge_u32 s24, {N}
    s_cbranch_scc1 K2_exit
    s_lshr_b32 s25, s24, 3                   ; g
    s_and_b32 s26, s24, 7                    ; j
    s_lshl_b32 s27, s25, 10
    s_lshl_b32 s28, s26, 1
    s_add_u32 s27, s27, s28
    s_add_u32 s27, s27, {OFF_OFF}
    s_add_u32 s28, s27, 2
    s_add_u32 s29, s27, {1024 - 14}
    s_cmp_eq_u32 s26, 7
    s_cselect_b32 s28, s29, s28
    v_lshlrev_b32 v4, 4, v1                  ; lane*16
    v_and_b32 v2, 31, v1
    v_lshlrev_b32 v2, 4, v2                  ; lane_off
    v_lshrrev_b32 v5, 5, v1                  ; half
    v_lshl_add_u32 v6, v5, 3, v2
    v_lshrrev_b32 v7, 1, v6
    s_mul_i32 s30, s3, {LIST_BYTES}
    v_lshl_add_u32 v3, v5, 3, s30
    s_lshl_b32 s31, s24, 9                   ; node*512
    s_add_u32 s32, s31, {A_OFF}
    s_add_u32 s33, s31, {U_OFF}
    s_lshl_b32 s34, s24, 8                   ; node*256
    s_mov_b32 s35, {WC_OFF}
    s_waitcnt lgkmcnt(0)
    s_mov_b32 s12, s8
    s_and_b32 s13, s9, 0xffff
    s_mov_b32 s14, {WS_USED}
    s_mov_b32 s15, 0x00020000
    s_mov_b32 s16, s4
    s_and_b32 s17, s5, 0xffff
    s_mov_b32 s18, {N*256}
    s_mov_b32 s19, 0x00020000
    s_mov_b32 s20, s6
    s_and_b32 s21, s7, 0xffff
    s_mov_b32 s22, {N*256}
    s_mov_b32 s23, 0x00020000
    buffer_load_ushort v56, v4, s[12:15], s27 offen
    buffer_load_ushort v57, v4, s[12:15], s28 offen
    buffer_load_dwordx4 v[8:11], v2, s[12:15], s32 offen
    buffer_load_dwordx4 v[12:15], v2, s[12:15], s35 offen
    buffer_load_dwordx2 v[60:61], v6, s[12:15], s33 offen
    buffer_load_dword v62, v7, s[16:19], s34 offen
    v_mov_b32 v16, 0
    v_mov_b32 v17, 0
    v_mov_b32 v18, 0
    v_mov_b32 v19, 0
    v_mov_b32 v20, 0
    v_mov_b32 v21, 0
    v_mov_b32 v22, 0
    v_mov_b32 v23, 0
    s_movk_i32 s36, {CH*4}
    v_mul_lo_u32 v58, v1, s36                ; lane*20000
    v_add_u32 v58, {S_OFF}, v58
    s_waitcnt vmcnt(4)
    v_sub_u32 v57, v57, v56                  ; cnt
    v_lshl_add_u32 v58, v56, 2, v58
K2_round:
    buffer_load_dwordx4 v[48:51], v58, s[12:15], 0 offen
    v_cmp_lt_u32 s[40:41], 0, v57
    v_cmp_lt_u32 s[42:43], 1, v57
    v_cmp_lt_u32 s[44:45], 2, v57
    v_cmp_lt_u32 s[46:47], 3, v57
    v_cmp_lt_u32 s[48:49], 4, v57
    s_bcnt1_i32_b64 s50, s[40:41]
    s_bcnt1_i32_b64 s51, s[42:43]
    s_bcnt1_i32_b64 s52, s[44:45]
    s_bcnt1_i32_b64 s53, s[46:47]
""")
    for k in range(4):
        a(f"v_mbcnt_lo_u32_b32 v{52+k}, s{40+2*k}, 0")
    for k in range(4):
        a(f"v_mbcnt_hi_u32_b32 v{52+k}, s{41+2*k}, v{52+k}")
    a(f"""
    s_add_u32 s54, s50, s51                  ; base2
    s_add_u32 s55, s54, s52                  ; base3
    s_add_u32 s56, s55, s53                  ; total
    s_lshl_b32 s57, s50, 3
    s_add_u32 s57, s57, s30
    s_lshl_b32 s58, s54, 3
    s_add_u32 s58, s58, s30
    s_lshl_b32 s59, s55, 3
    s_add_u32 s59, s59, s30
    s_lshl_b32 s60, s56, 3
    s_add_u32 s60, s60, s30
    v_lshl_add_u32 v52, v52, 3, s30
    v_lshl_add_u32 v53, v53, 3, s57
    v_lshl_add_u32 v54, v54, 3, s58
    v_lshl_add_u32 v55, v55, 3, s59
    v_mov_b32 v4, s60
    v_mov_b32 v24, {DUMMY_ROW}
    v_mov_b32 v25, 0
    s_mov_b64 exec, 1
    ds_write_b64 v4, v[24:25]
    s_mov_b64 exec, -1
    s_waitcnt vmcnt(0)
""")
    for k in range(4):
        a(f"v_and_b32 v{24+2*k}, 0xffff, v{48+k}")
        a(f"v_and_b32 v{25+2*k}, 0xffff0000, v{48+k}")
    for k in range(4):
        a(f"s_mov_b64 exec, s[{40+2*k}:{41+2*k}]")
        a(f"ds_write_b64 v{52+k}, v[{24+2*k}:{25+2*k}]")
    a(f"""
    s_mov_b64 exec, -1
    s_add_u32 s61, s56, 1
    s_lshr_b32 s61, s61, 1                   ; m = iterations
    s_cmp_eq_u32 s61, 0
    s_cbranch_scc1 K2_round_done
    v_mov_b32 v4, v3
    s_waitcnt lgkmcnt(0)
""")
    for j in range(4):
        a(f"ds_read_b64 v[{P(j)}:{P(j)+1}], v4 offset:{16*j}")
    a("v_add_u32 v4, 64, v4")
    a("s_waitcnt lgkmcnt(0)")
    for j in range(4):
        a(f"v_lshl_add_u32 v{56 if False else 59}, v{P(j)}, 9, v2")
        a(f"buffer_load_dwordx4 v[{D(j)}:{D(j)+3}], v59, s[12:15], 0 offen")
        if j < 3:
            a(f"s_cmp_le_u32 s61, {j+1}")
            a(f"s_cbranch_scc1 K2_small")
    a("s_sub_u32 s62, s61, 4")

    def compute(j, ds_next):
        d = D(j); p = P(j)
        a(f"v_pk_fma_f32 v[48:49], v[{p}:{p+1}], v[12:13], v[8:9] op_sel:[1,0,0] op_sel_hi:[1,1,1]")
        a(f"v_pk_fma_f32 v[50:51], v[{p}:{p+1}], v[14:15], v[10:11] op_sel:[1,0,0] op_sel_hi:[1,1,1]")
        if ds_next:
            a(f"ds_read_b64 v[{p}:{p+1}], v4 offset:{16*j}")
        a(f"v_pk_add_f32 v[48:49], v[48:49], v[{d}:{d+1}]")
        a(f"v_pk_add_f32 v[50:51], v[50:51], v[{d+2}:{d+3}]")
        for r in range(4):
            a(f"v_lshlrev_b32 v{52+r}, 16, v{d+r}")
        for r in range(4):
            a(f"v_exp_f32 v{48+r}, v{48+r}")
        if ds_next:
            a("s_waitcnt lgkmcnt(0)")
            a(f"v_lshl_add_u32 v59, v{p}, 9, v2")
            a(f"buffer_load_dwordx4 v[{d}:{d+3}], v59, s[12:15], 0 offen")
        a("v_pk_add_f32 v[48:49], v[48:49], 1.0 op_sel_hi:[1,0]")
        a("v_pk_add_f32 v[50:51], v[50:51], 1.0 op_sel_hi:[1,0]")
        for r in range(4):
            a(f"v_rcp_f32 v{48+r}, v{48+r}")
        a("s_nop 0")
        a("v_pk_add_f32 v[20:21], v[20:21], v[48:49]")
        a("v_pk_add_f32 v[22:23], v[22:23], v[50:51]")
        a("v_pk_fma_f32 v[16:17], v[48:49], v[52:53], v[16:17]")
        a("v_pk_fma_f32 v[18:19], v[50:51], v[54:55], v[18:19]")

    for j in range(4):
        a(f"K2_S{j}:")
        a("s_cmp_eq_u32 s62, 0")
        a(f"s_cbranch_scc1 K2_D{j}_0")
        a("s_sub_u32 s62, s62, 1")
        a("s_waitcnt vmcnt(3)")
        compute(j, True)
        if j == 3:
            a("v_add_u32 v4, 64, v4")
            a("s_branch K2_S0")
    for j0 in range(4):
        for q in range(4):
            a(f"K2_D{j0}_{q}:")
            a(f"s_waitcnt vmcnt({3-q})")
            compute((j0+q) % 4, False)
        a("s_branch K2_round_done")
    a("K2_small:")
    a("s_waitcnt vmcnt(0)")
    for q in range(3):
        compute(q, False)
        if q < 2:
            a(f"s_cmp_le_u32 s61, {q+1}")
            a("s_cbranch_scc1 K2_round_done")
    a(f"""
K2_round_done:
    s_cmp_eq_u64 s[48:49], 0
    s_cbranch_scc1 K2_epi
    v_subrev_u32 v57, 4, v57
    v_max_i32 v57, 0, v57
    v_add_u32 v58, 16, v58
    s_branch K2_round
K2_epi:
    s_nop 1
    v_permlane32_swap_b32 v16, v18
    v_permlane32_swap_b32 v17, v19
    v_permlane32_swap_b32 v20, v22
    v_permlane32_swap_b32 v21, v23
    s_nop 1
    v_pk_add_f32 v[16:17], v[16:17], v[18:19]
    v_pk_add_f32 v[20:21], v[20:21], v[22:23]
    s_mov_b32 s36, 0x358637bd                ; 1e-6
    v_add_f32 v20, s36, v20
    v_add_f32 v21, s36, v21
    v_rcp_f32 v20, v20
    v_rcp_f32 v21, v21
    s_waitcnt vmcnt(0)
    v_lshlrev_b32 v24, 16, v62
    v_and_b32 v25, 0xffff0000, v62
    v_pk_fma_f32 v[16:17], v[16:17], v[20:21], v[60:61]   ; z = U + agg
    v_mul_f32 v26, 0, v16
    v_mul_f32 v27, 0, v17
    v_cmp_lt_f32 vcc, 0, v16
    v_cmp_lt_f32 s[40:41], 0, v17
    s_nop 1
    v_cndmask_b32 v16, v26, v16, vcc
    v_cndmask_b32 v17, v27, v17, s[40:41]
    v_pk_add_f32 v[16:17], v[16:17], v[24:25]
    v_cvt_pk_bf16_f32 v16, v16, v17
    buffer_store_dword v16, v7, s[20:23], s34 offen
K2_exit:
    s_endpgm
""")

def main():
    hdr = open("gather_scatter__edge_featured_mpnn_gatedgcn__graph.s.ref").read().split("\n")
    top = [l for l in hdr if l.startswith(";") and "@launch" not in l and "Override" not in l and "grid=ceil" not in l]
    top = top[:13]
    a = Asm()
    out = "\n".join(top) + "\n"
    out += f"; @launch kernel=prep_kernel grid=({NC+NGB},1,1) block=(512,1,1) lds=131072\n"
    out += f"; @launch kernel=agg_kernel grid=({N//4},1,1) block=(256,1,1) lds={4*LIST_BYTES}\n"
    out += '.amdgcn_target "amdgcn-amd-amdhsa--gfx950"\n.text\n'
    gen_k1(a)
    gen_k2(a)
    out += a.text()
    out += '.section .rodata,"a"\n.p2align 6\n'
    out += kernel_desc("prep_kernel", 256, 64)
    out += ".p2align 6\n"
    out += kernel_desc("agg_kernel", 64, 64)
    open(sys.argv[1] if len(sys.argv) > 1 else "gather_scatter__edge_featured_mpnn_gatedgcn__graph.s", "w").write(out)

main()
```

```python
import sys

N = 10000
E = 320000
NC = 64
CH = E // NC
NB = 250
BN = 40
RB = 64
NGB = (N + RB - 1) // RB
NROWS = NGB * RB
T_OFF = 0
WF_OFF = 0x500000
WC_OFF = 0x510000
OFFB_OFF = 0x520000
S_OFF = 0x540000
WS_USED = 0x800000
DUMMY_ROW = NROWS
NEG_LOG2E = 0xbfb8aa3b

DIAG = "--diag" in sys.argv
EXP_SHIFT = 0
for x in sys.argv:
    if x.startswith("--shift="): EXP_SHIFT = int(x.split("=")[1])
DIAG_OFF = 0x2000000
def stamp(a, k):
    if DIAG:
        a(f"s_memrealtime s[{70+2*k}:{71+2*k}]")
        if k == 0:
            a("s_memtime s[86:87]")
def diag_store(a, kernel_idx, waves_per_wg, nst, wgreg="s2", wavereg="s3"):
    if not DIAG: return
    a("s_waitcnt vmcnt(0)")
    a(f"s_memrealtime s[{70+2*nst}:{71+2*nst}]")
    a("s_memtime s[88:89]")
    a("s_waitcnt lgkmcnt(0)")
    a("s_sub_u32 s88, s88, s86")
    a(f"s_mul_i32 s90, {wgreg}, {waves_per_wg}")
    a(f"s_add_u32 s90, s90, {wavereg}")
    a(f"s_lshl_b32 s90, s90, 6")
    a(f"s_add_u32 s90, s90, {DIAG_OFF + kernel_idx*0x400000}")
    a("s_add_u32 s92, s8, s90")
    a("s_addc_u32 s93, s9, 0")
    a("s_mov_b64 exec, 1")
    a("v_mov_b32 v1, 0")
    for k in range(nst+1):
        a(f"v_mov_b32 v2, s{70+2*k}")
        a(f"global_store_dword v1, v2, s[92:93] offset:{4*k}")
    a("v_mov_b32 v2, s88")
    a("global_store_dword v1, v2, s[92:93] offset:52")
    a("s_getreg_b32 s94, hwreg(HW_REG_HW_ID)")
    a("s_getreg_b32 s95, hwreg(HW_REG_XCC_ID)")
    a("v_mov_b32 v2, s94")
    a("global_store_dword v1, v2, s[92:93] offset:56")
    a("v_mov_b32 v2, s95")
    a("global_store_dword v1, v2, s[92:93] offset:60")

class Asm:
    def __init__(self):
        self.lines = []
    def __call__(self, s):
        for l in s.strip("\n").split("\n"):
            l = l.strip()
            if not l: continue
            if l.endswith(":") or l.startswith("."):
                self.lines.append(l)
            else:
                self.lines.append("    " + l)
    def text(self):
        return "\n".join(self.lines) + "\n"

def kernel_desc(name, vgpr, sgpr):
    acc = (vgpr + 3) // 4 * 4
    return f""".amdhsa_kernel {name}
  .amdhsa_next_free_vgpr {vgpr}
  .amdhsa_next_free_sgpr {sgpr}
  .amdhsa_accum_offset {acc}
  .amdhsa_group_segment_fixed_size 0
  .amdhsa_kernarg_size 96
  .amdhsa_user_sgpr_count 2
  .amdhsa_user_sgpr_kernarg_segment_ptr 1
  .amdhsa_system_sgpr_workgroup_id_x 1
.end_amdhsa_kernel
"""

def srd(a, r, lo, hi, nbytes):
    a(f"s_mov_b32 s{r}, {lo}")
    a(f"s_and_b32 s{r+1}, {hi}, 0xffff")
    a(f"s_mov_b32 s{r+2}, {nbytes}")
    a(f"s_mov_b32 s{r+3}, 0x00020000")

def dpp_scan(a, v):
    a(f"""
    s_nop 1
    v_add_u32_dpp v{v}, v{v}, v{v} row_shr:1 row_mask:0xf bank_mask:0xf bound_ctrl:0
    s_nop 1
    v_add_u32_dpp v{v}, v{v}, v{v} row_shr:2 row_mask:0xf bank_mask:0xf bound_ctrl:0
    s_nop 1
    v_add_u32_dpp v{v}, v{v}, v{v} row_shr:4 row_mask:0xf bank_mask:0xf bound_ctrl:0
    s_nop 1
    v_add_u32_dpp v{v}, v{v}, v{v} row_shr:8 row_mask:0xf bank_mask:0xf bound_ctrl:0
    s_nop 1
    v_add_u32_dpp v{v}, v{v}, v{v} row_bcast:15 row_mask:0xa bank_mask:0xf
    s_nop 1
    v_add_u32_dpp v{v}, v{v}, v{v} row_bcast:31 row_mask:0xc bank_mask:0xf
    s_nop 1
""")

K1_LDS = 81920
def gen_k1(a):
    a(f"""
.globl prep_kernel
.p2align 8
.type prep_kernel,@function
prep_kernel:
    s_load_dwordx2 s[8:9], s[0:1], 88        ; ws
    s_cmp_ge_u32 s2, {NC + NGB + 1}
    s_cbranch_scc1 K1_exit
    v_and_b32 v1, 63, v0                     ; lane
    v_lshrrev_b32 v2, 6, v0
    s_mov_b32 s96, s2
    v_readfirstlane_b32 s3, v2
""")
    stamp(a, 0)
    a(f"""
    s_cmp_ge_u32 s2, {NC}
    s_cbranch_scc1 K1_gemm
    s_load_dwordx2 s[4:5], s[0:1], 8         ; e_attr
    s_load_dwordx2 s[6:7], s[0:1], 16        ; src
    s_load_dwordx2 s[10:11], s[0:1], 24      ; dst
    v_mov_b32 v4, 0
    v_and_b32 v3, 255, v0
    v_lshlrev_b32 v3, 2, v3
    ds_write_b32 v3, v4
    s_mul_i32 s28, s2, {CH*4}
    s_mul_i32 s29, s2, {CH*2}
    v_lshlrev_b32 v3, 2, v0                  ; tid*4
    v_lshlrev_b32 v8, 1, v0                  ; tid*2
    s_waitcnt lgkmcnt(0)
""")
    srd(a, 12, "s10", "s11", E*4)
    srd(a, 16, "s6", "s7", E*4)
    srd(a, 20, "s4", "s5", E*2)
    srd(a, 24, "s8", "s9", WS_USED)
    NK = 10
    last_lim = CH - 512 * (NK - 1)
    a(f"""
    v_cmp_gt_u32 vcc, {last_lim}, v0
    s_mov_b64 s[60:61], vcc
""")
    for k in range(NK):
        if k == NK - 1:
            a("s_mov_b64 exec, s[60:61]")
        a(f"s_add_u32 s32, s28, {k*2048}")
        a(f"buffer_load_dword v{10+k}, v3, s[12:15], s32 offen")
    a("s_mov_b64 exec, -1")
    for k in range(NK):
        if k == NK - 1:
            a("s_mov_b64 exec, s[60:61]")
        a(f"s_add_u32 s32, s28, {k*2048}")
        a(f"buffer_load_dword v{20+k}, v3, s[16:19], s32 offen")
        a(f"s_add_u32 s33, s29, {k*1024}")
        a(f"buffer_load_ushort v{30+k}, v8, s[20:23], s33 offen")
    a("s_mov_b64 exec, -1")
    a("s_barrier")
    a("v_mov_b32 v9, 1")
    a("s_movk_i32 s34, 26215")
    a("s_movk_i32 s35, 40")
    for k in range(NK):
        a(f"s_waitcnt vmcnt({2*NK + NK-1-k})")
        if k == NK - 1:
            a("s_mov_b64 exec, s[60:61]")
        a(f"v_mul_u32_u24 v{50+k}, s34, v{10+k}")
        a(f"v_lshrrev_b32 v{50+k}, 20, v{50+k}")
        a(f"v_mul_u32_u24 v60, s35, v{50+k}")
        a(f"v_sub_u32 v{10+k}, v{10+k}, v60")
        a(f"v_lshlrev_b32 v{50+k}, 2, v{50+k}")
        a(f"ds_add_rtn_u32 v{40+k}, v{50+k}, v9")
    a("s_mov_b64 exec, -1")
    stamp(a, 1)
    a("s_waitcnt lgkmcnt(0)")
    a("s_barrier")
    stamp(a, 2)
    a(f"""
    v_lshlrev_b32 v61, 4, v1
    ds_read_b128 v[64:67], v61
    s_waitcnt lgkmcnt(0)
    v_add_u32 v68, v64, v65                  ; partial
    v_add_u32 v69, v68, v66
    v_add_u32 v70, v69, v67
    v_mov_b32 v71, v70
""")
    dpp_scan(a, 71)
    a(f"""
    v_sub_u32 v72, v71, v70
    v_add_u32 v73, v72, v64
    v_add_u32 v74, v72, v68
    v_add_u32 v75, v72, v69
    ds_write_b128 v61, v[72:75] offset:1024
    s_cmp_lg_u32 s3, 0
    s_cbranch_scc1 K1_sort_nooff
    v_lshl_or_b32 v76, v64, 16, v72
    v_lshl_or_b32 v77, v65, 16, v73
    v_lshl_or_b32 v78, v66, 16, v74
    v_lshl_or_b32 v79, v67, 16, v75
    v_lshlrev_b32 v80, 10, v1                ; (4l)*256
    s_lshl_b32 s37, s2, 2
    s_add_u32 s37, s37, {OFFB_OFF}
    buffer_store_dword v76, v80, s[24:27], s37 offen
    buffer_store_dword v77, v80, s[24:27], s37 offen offset:256
    v_cmp_gt_u32 vcc, 62, v1
    v_cmp_gt_u32 s[38:39], 63, v1
    s_mov_b64 exec, vcc
    buffer_store_dword v78, v80, s[24:27], s37 offen offset:512
    buffer_store_dword v79, v80, s[24:27], s37 offen offset:768
    s_mov_b64 exec, -1
K1_sort_nooff:
    s_waitcnt lgkmcnt(0)
""")
    for k in range(NK):
        if k == NK - 1:
            a("s_mov_b64 exec, s[60:61]")
        a(f"ds_read_b32 v{60+k}, v{50+k} offset:1024")
    a("s_mov_b64 exec, -1")
    a("s_waitcnt vmcnt(0) lgkmcnt(0)")
    stamp(a, 3)
    for k in range(NK):
        if k == NK - 1:
            a("s_mov_b64 exec, s[60:61]")
        a(f"v_add_u32 v{60+k}, v{60+k}, v{40+k}")
        a(f"v_lshlrev_b32 v{60+k}, 3, v{60+k}")
        a(f"v_lshl_or_b32 v{70+2*(k%2)}, v{10+k}, 16, v{20+k}")
        a(f"v_lshlrev_b32 v{71+2*(k%2)}, 16, v{30+k}")
        a(f"ds_write_b64 v{60+k}, v[{70+2*(k%2)}:{71+2*(k%2)}] offset:2048")
    a("s_mov_b64 exec, -1")
    a("s_waitcnt lgkmcnt(0)")
    a("s_barrier")
    stamp(a, 4)
    a(f"""
    v_lshlrev_b32 v3, 4, v0
    ds_read_b128 v[52:55], v3 offset:2048
    ds_read_b128 v[56:59], v3 offset:{2048+8192}
    ds_read_b128 v[60:63], v3 offset:{2048+16384}
    ds_read_b128 v[64:67], v3 offset:{2048+24576}
    v_cmp_gt_u32 vcc, 452, v0
    s_mov_b64 exec, vcc
    ds_read_b128 v[68:71], v3 offset:{2048+32768}
    s_mov_b64 exec, -1
    s_mul_i32 s37, s2, {CH*8}
    s_add_u32 s37, s37, {S_OFF}
    s_add_u32 s38, s37, 8192
    s_add_u32 s39, s37, 16384
    s_add_u32 s40, s37, 24576
    s_add_u32 s41, s37, 32768
    s_waitcnt lgkmcnt(4)
    buffer_store_dwordx4 v[52:55], v3, s[24:27], s37 offen
    s_waitcnt lgkmcnt(3)
    buffer_store_dwordx4 v[56:59], v3, s[24:27], s38 offen
    s_waitcnt lgkmcnt(2)
    buffer_store_dwordx4 v[60:63], v3, s[24:27], s39 offen
    s_waitcnt lgkmcnt(1)
    buffer_store_dwordx4 v[64:67], v3, s[24:27], s40 offen
    s_waitcnt lgkmcnt(0)
    s_mov_b64 exec, vcc
    buffer_store_dwordx4 v[68:71], v3, s[24:27], s41 offen
    s_mov_b64 exec, -1
""")
    diag_store(a, 0, 8, 5, wgreg="s96")
    a("s_endpgm")
    a(f"""
K1_gemm:
    s_sub_u32 s2, s2, {NC}
    s_load_dwordx2 s[4:5], s[0:1], 0         ; x
    s_load_dwordx4 s[40:43], s[0:1], 32      ; w_a, w_b
    s_load_dwordx4 s[44:47], s[0:1], 48      ; w_c, w_u
    s_load_dwordx2 s[48:49], s[0:1], 64      ; w_v
    v_lshlrev_b32 v3, 4, v0
    v_lshrrev_b32 v4, 4, v0                  ; k0 (0..31)
    v_and_b32 v5, 3, v4
    v_bfe_u32 v6, v4, 3, 1
    v_lshl_or_b32 v5, v6, 2, v5              ; h
    v_lshlrev_b32 v5, 5, v5                  ; h*32
    v_xor_b32 v8, v3, v5
    s_waitcnt lgkmcnt(0)
    s_cmp_eq_u32 s2, {NGB}
    s_cselect_b32 s12, s40, s42
    s_cselect_b32 s13, s41, s43
    s_cselect_b32 s16, s46, s48
    s_cselect_b32 s17, s47, s49
    s_and_b32 s13, s13, 0xffff
    s_mov_b32 s14, 32768
    s_mov_b32 s15, 0x00020000
    s_and_b32 s17, s17, 0xffff
    s_mov_b32 s18, 32768
    s_mov_b32 s19, 0x00020000
""")
    srd(a, 20, "s4", "s5", N*256)
    srd(a, 24, "s8", "s9", WS_USED)
    for i in range(4):
        a(f"s_movk_i32 s31, {i*8192}")
        a(f"buffer_load_dwordx4 v[{64+4*i}:{67+4*i}], v3, s[12:15], s31 offen")
        a(f"buffer_load_dwordx4 v[{80+4*i}:{83+4*i}], v3, s[16:19], s31 offen")
    a(f"""
    s_lshl_b32 s32, s2, 14
    s_add_u32 s33, s32, 8192
    buffer_load_dwordx4 v[96:99], v3, s[20:23], s32 offen
    buffer_load_dwordx4 v[100:103], v3, s[20:23], s33 offen
    v_and_b32 v9, 15, v4
    v_lshlrev_b32 v9, 4, v9
    v_xor_b32 v9, v3, v9
    v_lshrrev_b32 v6, 4, v1                  ; g
    v_bfe_u32 v10, v1, 2, 2                  ; r
    v_and_b32 v11, 1, v6
    v_lshl_or_b32 v11, v11, 2, v10           ; h
    v_xor_b32 v11, s3, v11                   ; ft ^ h
    v_lshlrev_b32 v11, 5, v11
    v_lshl_add_u32 v10, v6, 3, v10           ; 8g + r
    v_lshl_add_u32 v11, v10, 8, v11
    v_and_b32 v12, 3, v1
    v_lshl_add_u32 v11, v12, 3, v11
    v_and_b32 v12, 15, v1                    ; n
    v_xor_b32 v13, v6, v12
    v_lshlrev_b32 v13, 4, v13
    v_lshl_add_u32 v13, v12, 8, v13
""")
    for s in range(4):
        a(f"v_xor_b32 v{14+s}, {s*64}, v13")
    for r in range(32):
        a(f"v_mov_b32 v{128+r}, 0")
    for i in range(4):
        a(f"s_waitcnt vmcnt({2 + 6 - 2*i})")
        a(f"ds_write_b128 v8, v[{64+4*i}:{67+4*i}] offset:{i*8192}")
        a(f"ds_write_b128 v8, v[{80+4*i}:{83+4*i}] offset:{32768+i*8192}")
    a("v_add_u32 v9, 0x10000, v9")
    a("s_waitcnt vmcnt(1)")
    a("ds_write_b128 v9, v[96:99]")
    a("s_waitcnt vmcnt(0)")
    a("ds_write_b128 v9, v[100:103] offset:8192")
    a("s_waitcnt lgkmcnt(0)")
    a("s_barrier")
    stamp(a, 1)
    for M in range(2):
        for s in range(4):
            r = 64 + (M*4+s)*4
            for hh in range(2):
                off = M*32768 + s*8192 + hh*1024
                a(f"ds_read_b64_tr_b16 v[{r+2*hh}:{r+2*hh+1}], v11 offset:{off}")
    a(f"s_cmp_eq_u32 s2, {NGB}")
    a("s_cbranch_scc1 K1_fragprep")
    for s in range(4):
        a(f"v_add_u32 v{14+s}, 0x10000, v{14+s}")
    def bread(t):
        for s in range(4):
            r = 96 + 16*(t % 2) + 4*s
            a(f"ds_read_b128 v[{r}:{r+3}], v{14+s} offset:{t*4096}")
    bread(0)
    bread(1)
    a(f"""
    v_lshlrev_b32 v18, 9, v12
    v_lshl_add_u32 v18, v6, 4, v18
    s_lshl_b32 s30, s3, 6
    v_add_u32 v18, s30, v18
    s_lshl_b32 s35, s2, 15                   ; b*32768
    s_mov_b32 s36, {NEG_LOG2E:#x}
""")
    for t in range(4):
        a(f"s_waitcnt lgkmcnt({4 if t < 3 else 0})")
        for s in range(4):
            for M in range(2):
                acc = 128 + 8*t + 4*M
                af = 64 + (M*4+s)*4
                xf = 96 + 16*(t % 2) + 4*s
                a(f"v_mfma_f32_16x16x32_bf16 v[{acc}:{acc+3}], v[{af}:{af+3}], v[{xf}:{xf+3}], v[{acc}:{acc+3}]")
        if t + 2 < 4:
            bread(t+2)
    stamp(a, 2)
    a("s_nop 7")
    for t in range(4):
        a(f"s_add_u32 s33, s35, {T_OFF + t*8192}")
        accb = 128 + 8*t
        accv = 128 + 8*t + 4
        o = 20 + 4*t
        a(f"v_cvt_pk_bf16_f32 v40, v{accv}, v{accv+1}")
        a(f"v_cvt_pk_bf16_f32 v41, v{accv+2}, v{accv+3}")
        for r in range(4):
            lo = 42 + r
            if r % 2 == 0:
                a(f"v_and_b32 v{lo}, 0xffff, v{40 + r//2}")
            else:
                a(f"v_lshrrev_b32 v{lo}, 16, v{40 + r//2}")
            b = accb + r
            a(f"v_mul_f32 v{b}, s36, v{b}")
            a(f"v_and_b32 v46, 0x7fffffff, v{b}")
            a(f"v_add_u32 v46, 0x8000, v46")
            a(f"v_max_u32 v46, v46, v{lo}")
            a(f"v_sub_u32 v46, v46, v{lo}")
            a(f"v_and_b32 v46, 0xffff0000, v46")
            a(f"v_and_b32 v47, 0x80000000, v{b}")
            a(f"v_or3_b32 v{o+r}, v46, v47, v{lo}")
        a(f"buffer_store_dwordx4 v[{o}:{o+3}], v18, s[24:27], s33 offen")
    diag_store(a, 0, 8, 3, wgreg="s96")
    a("s_endpgm")
    a(f"""
K1_fragprep:
    v_lshlrev_b32 v3, 4, v1
    s_lshl_b32 s33, s3, 12                   ; tile w -> w*4096
    s_add_u32 s33, s33, {WF_OFF}
    s_add_u32 s34, s33, 32768
    s_waitcnt lgkmcnt(0)
""")
    for M in range(2):
        for s in range(4):
            r = 64 + (M*4+s)*4
            a(f"buffer_store_dwordx4 v[{r}:{r+3}], v3, s[24:27], s{33+M} offen offset:{s*1024}")
    a(f"""
    s_cmp_lg_u32 s3, 0
    s_cbranch_scc1 K1_exit
    s_mov_b32 s12, s44
    s_and_b32 s13, s45, 0xffff
    s_mov_b32 s14, 256
    s_mov_b32 s15, 0x00020000
    s_mov_b32 s36, {NEG_LOG2E:#x}
    v_lshlrev_b32 v3, 2, v1
    buffer_load_dword v4, v3, s[12:15], 0 offen
    v_mov_b32 v6, 0x7f000000
    v_mov_b32 v7, 0x7f000000
    v_lshlrev_b32 v8, 3, v1
    s_mov_b32 s33, {T_OFF + DUMMY_ROW*512}
    buffer_store_dwordx2 v[6:7], v8, s[24:27], s33 offen
    s_waitcnt vmcnt(1)
    v_lshlrev_b32 v12, 16, v4
    v_and_b32 v13, 0xffff0000, v4
    v_mul_f32 v12, s36, v12
    v_mul_f32 v13, s36, v13
    s_mov_b32 s33, {WC_OFF}
    buffer_store_dwordx2 v[12:13], v8, s[24:27], s33 offen
K1_exit:
    s_endpgm
""")

XS_OFF = 0
AU_OFF = 12288
AU_STRIDE = 1040
CNT_OFF = AU_OFF + 48*AU_STRIDE
INFO_OFF = CNT_OFF + 256
MISC_OFF = INFO_OFF + 512
LIST_OFF = MISC_OFF + 64
LIST_CAP = 4096 + 64
K2_LDS = LIST_OFF + LIST_CAP*8
SLOW_LIST_BYTES = 66*8

def gen_k2(a):
    D = lambda j: 24 + 4*j
    P = lambda j: 40 + 2*j
    a(f"""
.globl agg_kernel
.p2align 8
.type agg_kernel,@function
agg_kernel:
    s_cmp_ge_u32 s2, {NB}
    s_cbranch_scc1 K2_exit
    s_load_dwordx2 s[4:5], s[0:1], 0         ; x
    s_load_dwordx2 s[6:7], s[0:1], 72        ; out
    s_load_dwordx2 s[8:9], s[0:1], 88        ; ws
    v_lshrrev_b32 v2, 6, v0
    v_and_b32 v1, 63, v0
    v_readfirstlane_b32 s3, v2
""")
    stamp(a, 0)
    a(f"""
    v_mov_b32 v4, 0
    v_lshlrev_b32 v3, 2, v0
    v_cmp_gt_u32 vcc, 64, v0
    s_mov_b64 exec, vcc
    ds_write_b32 v3, v4 offset:{CNT_OFF}
    ds_write_b32 v3, v4 offset:{MISC_OFF}
    s_mov_b64 exec, -1
    v_lshrrev_b32 v5, 4, v1
    s_lshl_b32 s24, s3, 2
    v_add_u32 v5, s24, v5                    ; c
    v_lshlrev_b32 v6, 2, v5
    s_lshl_b32 s25, s2, 8
    s_add_u32 s25, s25, {OFFB_OFF}
    v_lshlrev_b32 v7, 4, v0
    v_bfe_u32 v8, v0, 4, 4
    v_lshlrev_b32 v8, 4, v8
    v_xor_b32 v8, v7, v8
    s_mul_i32 s26, s2, {BN*256}
    v_lshlrev_b32 v9, 4, v1                  ; lane*16
    s_lshl_b32 s27, s3, 12
    s_add_u32 s27, s27, {WF_OFF}
    v_and_b32 v2, 31, v1
    v_lshlrev_b32 v2, 4, v2                  ; lane_off
    s_mov_b32 s35, {WC_OFF}
    s_waitcnt lgkmcnt(0)
""")
    srd(a, 12, "s8", "s9", WS_USED)
    srd(a, 16, "s4", "s5", N*256)
    srd(a, 20, "s6", "s7", N*256)
    a(f"""
    buffer_load_dword v56, v6, s[12:15], s25 offen
    v_cmp_gt_u32 vcc, 768, v0
    s_mov_b64 exec, vcc
    s_cbranch_execz K2_nox
    buffer_load_dwordx4 v[92:95], v7, s[16:19], s26 offen     ; x stage
K2_nox:
    s_mov_b64 exec, -1
    buffer_load_dwordx4 v[76:79], v9, s[12:15], s27 offen
    buffer_load_dwordx4 v[80:83], v9, s[12:15], s27 offen offset:1024
    buffer_load_dwordx4 v[84:87], v9, s[12:15], s27 offen offset:2048
    buffer_load_dwordx4 v[88:91], v9, s[12:15], s27 offen offset:3072
    buffer_load_dwordx4 v[12:15], v2, s[12:15], s35 offen     ; wc'
    s_barrier
""")
    a(f"""
    s_mov_b32 s28, {CH*8}
    v_mul_lo_u32 v57, v5, s28
    v_and_b32 v58, 15, v1
    v_lshl_add_u32 v57, v58, 3, v57
    v_add_u32 v57, {S_OFF}, v57
    s_waitcnt vmcnt(5)
""")
    a(f"""
    v_and_b32 v59, 0xffff, v56               ; start
    v_lshrrev_b32 v56, 16, v56               ; cnt
    v_lshl_add_u32 v57, v59, 3, v57
    v_cmp_lt_u32 vcc, 64, v56
    v_cmp_lt_u32 s[40:41], v58, v56
    v_add_u32 v59, 16, v58
    v_cmp_lt_u32 s[42:43], v59, v56
    v_add_u32 v59, 32, v58
    v_cmp_lt_u32 s[44:45], v59, v56
    v_add_u32 v59, 48, v58
    v_cmp_lt_u32 s[46:47], v59, v56
    s_cmp_eq_u64 vcc, 0
    s_cbranch_scc1 K2_noslow
    v_mov_b32 v59, {MISC_OFF+4}
    v_mov_b32 v60, 1
    ds_write_b32 v59, v60
K2_noslow:
""")
    for i in range(4):
        a(f"s_mov_b64 exec, s[{40+2*i}:{41+2*i}]")
        a(f"s_cbranch_execz K2_ent_done")
        a(f"buffer_load_dwordx2 v[{64+2*i}:{65+2*i}], v57, s[12:15], 0 offen offset:{128*i}")
    a("K2_ent_done:")
    a("s_mov_b64 exec, -1")
    stamp(a, 1)
    a(f"""
    s_cmp_lg_u64 s[40:41], 0
    s_cselect_b32 s29, 1, 0
    s_cmp_lg_u64 s[42:43], 0
    s_addc_u32 s29, s29, 0
    s_cmp_lg_u64 s[44:45], 0
    s_addc_u32 s29, s29, 0
    s_cmp_lg_u64 s[46:47], 0
    s_addc_u32 s29, s29, 0
    s_cmp_eq_u32 s29, 2
    s_cbranch_scc1 K2_w2
    s_cmp_eq_u32 s29, 1
    s_cbranch_scc1 K2_w1
    s_cmp_eq_u32 s29, 3
    s_cbranch_scc1 K2_w3
    s_cmp_eq_u32 s29, 4
    s_cbranch_scc1 K2_w4
    s_waitcnt vmcnt(0)
    s_branch K2_wdone
K2_w1:
    s_waitcnt vmcnt(1)
    s_branch K2_wdone
K2_w3:
    s_waitcnt vmcnt(3)
    s_branch K2_wdone
K2_w4:
    s_waitcnt vmcnt(4)
    s_branch K2_wdone
K2_w2:
    s_waitcnt vmcnt(2)
K2_wdone:
    v_cmp_gt_u32 vcc, 768, v0
    s_mov_b64 exec, vcc
    ds_write_b128 v8, v[92:95] offset:{XS_OFF}
    s_mov_b64 exec, -1
    s_waitcnt lgkmcnt(0)
    s_barrier
    v_lshrrev_b32 v6, 4, v1                  ; g
    v_and_b32 v10, 15, v1                    ; n
    v_xor_b32 v11, v6, v10
    v_lshlrev_b32 v11, 4, v11
    v_lshl_add_u32 v11, v10, 8, v11
""")
    for s in range(4):
        a(f"v_xor_b32 v{16+s}, {s*64}, v11")
    for r in range(12):
        a(f"v_mov_b32 v{96+r}, 0")
    for nt in range(3):
        for s in range(4):
            a(f"ds_read_b128 v[{108+4*s}:{111+4*s}], v{16+s} offset:{XS_OFF + nt*4096}")
        a("s_waitcnt lgkmcnt(0)")
        for s in range(4):
            a(f"v_mfma_f32_16x16x32_bf16 v[{96+4*nt}:{99+4*nt}], v[{76+4*s}:{79+4*s}], v[{108+4*s}:{111+4*s}], v[{96+4*nt}:{99+4*nt}]")
        a("s_nop 1")
    a(f"""
    s_mov_b32 s30, {NEG_LOG2E:#x}
    s_cmp_lt_u32 s3, 8
    s_cselect_b32 s30, s30, 1.0
    s_movk_i32 s31, {AU_STRIDE}
    v_mul_u32_u24 v11, s31, v10
    v_lshl_add_u32 v11, v6, 4, v11
    s_lshl_b32 s31, s3, 6
    v_add_u32 v11, s31, v11
    s_nop 4
""")
    for r in range(12):
        a(f"v_mul_f32 v{96+r}, s30, v{96+r}")
    for nt in range(3):
        a(f"ds_write_b128 v11, v[{96+4*nt}:{99+4*nt}] offset:{AU_OFF + nt*16*AU_STRIDE}")
    a("s_waitcnt vmcnt(0)")
    stamp(a, 2)
    a("v_mov_b32 v9, 1")
    for i in range(4):
        a(f"s_mov_b64 exec, s[{40+2*i}:{41+2*i}]")
        a(f"s_cbranch_execz K2_at_done")
        a(f"v_lshrrev_b32 v{76+i}, 16, v{64+2*i}")
        a(f"v_lshlrev_b32 v{76+i}, 2, v{76+i}")
        a(f"ds_add_rtn_u32 v{72+i}, v{76+i}, v9 offset:{CNT_OFF}")
    a("K2_at_done:")
    a("s_mov_b64 exec, -1")
    a("s_waitcnt lgkmcnt(0)")
    a("s_barrier")
    a(f"""
    v_lshlrev_b32 v3, 2, v1
    ds_read_b32 v80, v3 offset:{CNT_OFF}
    v_mov_b32 v59, {MISC_OFF+4}
    ds_read_b32 v60, v59
    s_waitcnt lgkmcnt(0)
    v_readfirstlane_b32 s62, v60
    v_add_u32 v81, 1, v80
    v_and_b32 v81, -2, v81                   ; padded
    v_mov_b32 v82, v81
""")
    dpp_scan(a, 82)
    a(f"""
    v_sub_u32 v82, v82, v81                  ; base
    s_cmp_lg_u32 s62, 0
    s_cbranch_scc1 K2_lists_done
    s_cmp_lg_u32 s3, 0
    s_cbranch_scc1 K2_noinfo
    v_lshlrev_b32 v83, 3, v1
    v_lshrrev_b32 v85, 1, v81
    v_mov_b32 v84, v82
    ds_write_b64 v83, v[84:85] offset:{INFO_OFF}
    v_cmp_lt_u32 vcc, v80, v81
    v_add_u32 v83, v82, v80
    v_lshlrev_b32 v83, 3, v83
    v_mov_b32 v84, {DUMMY_ROW}
    v_mov_b32 v85, 0
    s_mov_b64 exec, vcc
    ds_write_b64 v83, v[84:85] offset:{LIST_OFF}
    s_mov_b64 exec, -1
K2_noinfo:
""")
    for i in range(4):
        a(f"v_and_b32 v{76+i}, 0xfc, v{76+i}")
    for i in range(4):
        a(f"ds_bpermute_b32 v{84+i}, v{76+i}, v82")
    a("s_waitcnt lgkmcnt(0)")
    for i in range(4):
        a(f"s_mov_b64 exec, s[{40+2*i}:{41+2*i}]")
        a(f"s_cbranch_execz K2_lists_done")
        a(f"v_add_u32 v{84+i}, v{84+i}, v{72+i}")
        a(f"v_lshlrev_b32 v{84+i}, 3, v{84+i}")
        if EXP_SHIFT:
            a(f"v_bfe_u32 v{64+2*i}, v{64+2*i}, {EXP_SHIFT}, {16-EXP_SHIFT}")
        else:
            a(f"v_and_b32 v{64+2*i}, 0xffff, v{64+2*i}")
        a(f"ds_write_b64 v{84+i}, v[{64+2*i}:{65+2*i}] offset:{LIST_OFF}")
    a(f"""
K2_lists_done:
    s_mov_b64 exec, -1
    s_waitcnt lgkmcnt(0)
    s_barrier
""")
    stamp(a, 3)
    a(f"""
    v_lshrrev_b32 v5, 5, v1                  ; half
    v_lshl_add_u32 v6, v5, 3, v2
    v_lshrrev_b32 v7, 1, v6
    v_mov_b32 v63, 1
    v_mov_b32 v57, {MISC_OFF}
K2_node:
    s_mov_b64 exec, 1
    ds_add_rtn_u32 v3, v57, v63
    s_mov_b64 exec, -1
    s_waitcnt lgkmcnt(0)
    v_readfirstlane_b32 s24, v3
    s_cmp_ge_u32 s24, {BN}
    s_cbranch_scc1 K2_done
    s_mul_i32 s25, s24, {AU_STRIDE}
    s_add_u32 s25, s25, {AU_OFF}
    v_add_u32 v3, s25, v2
    ds_read_b128 v[8:11], v3
    v_add_u32 v3, s25, v6
    ds_read_b64 v[60:61], v3 offset:512
    s_and_b32 s26, s24, 15
    s_lshl_b32 s26, s26, 4
    s_lshl_b32 s27, s24, 8
    v_xor_b32 v3, s26, v7
    v_add_u32 v3, s27, v3
    ds_read_b32 v62, v3 offset:{XS_OFF}
    s_lshl_b32 s27, s24, 3
    v_mov_b32 v3, s27
    ds_read_b64 v[58:59], v3 offset:{INFO_OFF}
    v_mov_b32 v16, 0
    v_mov_b32 v17, 0
    v_mov_b32 v18, 0
    v_mov_b32 v19, 0
    v_mov_b32 v20, 0
    v_mov_b32 v21, 0
    v_mov_b32 v22, 0
    v_mov_b32 v23, 0
    s_cmp_lg_u32 s62, 0
    s_cbranch_scc1 K2_slow_init
    s_waitcnt lgkmcnt(0)
    v_readfirstlane_b32 s26, v58             ; base
    v_readfirstlane_b32 s61, v59             ; m
    s_lshl_b32 s26, s26, 3
    s_add_u32 s26, s26, {LIST_OFF}
    v_lshl_add_u32 v4, v5, 3, s26
K2_main:
    s_cmp_eq_u32 s61, 0
    s_cbranch_scc1 K2_round_done
""")
    for j in range(4):
        a(f"ds_read_b64 v[{P(j)}:{P(j)+1}], v4 offset:{16*j}")
    a("v_add_u32 v4, 64, v4")
    a("s_waitcnt lgkmcnt(0)")
    for j in range(4):
        a(f"v_lshl_add_u32 v59, v{P(j)}, 9, v2")
        a(f"buffer_load_dwordx4 v[{D(j)}:{D(j)+3}], v59, s[12:15], 0 offen")
        if j < 3:
            a(f"s_cmp_le_u32 s61, {j+1}")
            a(f"s_cbranch_scc1 K2_small")
    a("s_sub_u32 s63, s61, 4")

    def compute(j, ds_next):
        d = D(j); p = P(j)
        a(f"v_pk_fma_f32 v[48:49], v[{p}:{p+1}], v[12:13], v[8:9] op_sel:[1,0,0] op_sel_hi:[1,1,1]")
        a(f"v_pk_fma_f32 v[50:51], v[{p}:{p+1}], v[14:15], v[10:11] op_sel:[1,0,0] op_sel_hi:[1,1,1]")
        if ds_next:
            a(f"ds_read_b64 v[{p}:{p+1}], v4 offset:{16*j}")
        a(f"v_pk_add_f32 v[48:49], v[48:49], v[{d}:{d+1}]")
        a(f"v_pk_add_f32 v[50:51], v[50:51], v[{d+2}:{d+3}]")
        for r in range(4):
            a(f"v_lshlrev_b32 v{52+r}, 16, v{d+r}")
        for r in range(4):
            a(f"v_exp_f32 v{48+r}, v{48+r}")
        if ds_next:
            a("s_waitcnt lgkmcnt(0)")
            a(f"v_lshl_add_u32 v59, v{p}, 9, v2")
            a(f"buffer_load_dwordx4 v[{d}:{d+3}], v59, s[12:15], 0 offen")
        a("v_pk_add_f32 v[48:49], v[48:49], 1.0 op_sel_hi:[1,0]")
        a("v_pk_add_f32 v[50:51], v[50:51], 1.0 op_sel_hi:[1,0]")
        for r in range(4):
            a(f"v_rcp_f32 v{48+r}, v{48+r}")
        a("s_nop 0")
        a("v_pk_add_f32 v[20:21], v[20:21], v[48:49]")
        a("v_pk_add_f32 v[22:23], v[22:23], v[50:51]")
        a("v_pk_fma_f32 v[16:17], v[48:49], v[52:53], v[16:17]")
        a("v_pk_fma_f32 v[18:19], v[50:51], v[54:55], v[18:19]")

    for j in range(4):
        a(f"K2_S{j}:")
        a("s_cmp_eq_u32 s63, 0")
        a(f"s_cbranch_scc1 K2_D{j}_0")
        a("s_sub_u32 s63, s63, 1")
        a("s_waitcnt vmcnt(3)")
        compute(j, True)
        if j == 3:
            a("v_add_u32 v4, 64, v4")
            a("s_branch K2_S0")
    for j0 in range(4):
        for q in range(4):
            a(f"K2_D{j0}_{q}:")
            a(f"s_waitcnt vmcnt({3-q})")
            compute((j0+q) % 4, False)
        a("s_branch K2_round_done")
    a("K2_small:")
    a("s_waitcnt vmcnt(0)")
    for q in range(3):
        compute(q, False)
        if q < 2:
            a(f"s_cmp_le_u32 s61, {q+1}")
            a("s_cbranch_scc1 K2_round_done")
    a(f"""
K2_round_done:
    s_cmp_lg_u32 s62, 0
    s_cbranch_scc1 K2_slow_next
K2_epi:
    s_nop 1
    v_permlane32_swap_b32 v16, v18
    v_permlane32_swap_b32 v17, v19
    v_permlane32_swap_b32 v20, v22
    v_permlane32_swap_b32 v21, v23
    s_nop 1
    v_pk_add_f32 v[16:17], v[16:17], v[18:19]
    v_pk_add_f32 v[20:21], v[20:21], v[22:23]
    s_mov_b32 s36, 0x358637bd                ; 1e-6
    v_add_f32 v20, s36, v20
    v_add_f32 v21, s36, v21
    v_rcp_f32 v20, v20
    v_rcp_f32 v21, v21
    v_lshlrev_b32 v24, 16, v62
    v_and_b32 v25, 0xffff0000, v62
    v_pk_fma_f32 v[16:17], v[16:17], v[20:21], v[60:61]   ; z = U + agg
    v_mul_f32 v26, 0, v16
    v_mul_f32 v27, 0, v17
    v_cmp_lt_f32 vcc, 0, v16
    v_cmp_lt_f32 s[40:41], 0, v17
    s_mul_i32 s34, s2, {BN}
    s_add_u32 s34, s34, s24
    s_lshl_b32 s34, s34, 8
    v_cndmask_b32 v16, v26, v16, vcc
    v_cndmask_b32 v17, v27, v17, s[40:41]
    v_pk_add_f32 v[16:17], v[16:17], v[24:25]
    v_cvt_pk_bf16_f32 v16, v16, v17
    buffer_store_dword v16, v7, s[20:23], s34 offen
    s_branch K2_node
""")
    a(f"""
K2_slow_init:
    s_waitcnt lgkmcnt(0)
    s_mov_b32 s50, 0
    s_mov_b32 s51, 0
    s_mov_b32 s53, 0
    s_mul_i32 s54, s3, {SLOW_LIST_BYTES}
    s_add_u32 s54, s54, {LIST_OFF}
    s_sub_u32 s50, s50, 1                    ; c = -1
K2_slow_next:
    s_cmp_lt_u32 s51, s53
    s_cbranch_scc1 K2_slow_seg
    s_add_u32 s50, s50, 1
    s_cmp_ge_u32 s50, {NC}
    s_cbranch_scc1 K2_epi
    s_lshl_b32 s55, s2, 8
    s_lshl_b32 s56, s50, 2
    s_add_u32 s55, s55, s56
    s_add_u32 s55, s55, {OFFB_OFF}
    v_mov_b32 v3, 0
    buffer_load_dword v58, v3, s[12:15], s55 offen
    s_waitcnt vmcnt(0)
    v_readfirstlane_b32 s52, v58
    s_lshr_b32 s53, s52, 16
    s_and_b32 s52, s52, 0xffff
    s_mov_b32 s51, 0
    s_branch K2_slow_next
K2_slow_seg:
    v_add_u32 v3, s51, v1
    v_cmp_gt_u32 vcc, s53, v3
    s_mul_i32 s55, s50, {CH*8}
    s_add_u32 s55, s55, {S_OFF}
    s_add_u32 s56, s52, s51
    s_lshl_b32 s56, s56, 3
    s_add_u32 s55, s55, s56
    v_lshlrev_b32 v3, 3, v1
    v_mov_b32 v58, -1
    v_mov_b32 v59, 0
    s_mov_b64 exec, vcc
    buffer_load_dwordx2 v[58:59], v3, s[12:15], s55 offen
    s_mov_b64 exec, -1
    s_add_u32 s51, s51, 64
    s_waitcnt vmcnt(0)
    v_lshrrev_b32 v3, 16, v58
    v_cmp_eq_u32 vcc, s24, v3
    s_bcnt1_i32_b64 s56, vcc
    v_mbcnt_lo_u32_b32 v3, vcc_lo, 0
    v_mbcnt_hi_u32_b32 v3, vcc_hi, v3
    v_lshl_add_u32 v3, v3, 3, s54
    v_and_b32 v58, 0xffff, v58
    s_lshl_b32 s57, s56, 3
    s_add_u32 s57, s57, s54
    v_mov_b32 v56, s57
    v_mov_b32 v48, {DUMMY_ROW}
    v_mov_b32 v49, 0
    s_mov_b64 exec, vcc
    ds_write_b64 v3, v[58:59]
    s_mov_b64 exec, 1
    ds_write_b64 v56, v[48:49]
    s_mov_b64 exec, -1
    s_add_u32 s61, s56, 1
    s_lshr_b32 s61, s61, 1
    v_lshl_add_u32 v4, v5, 3, s54
    s_waitcnt lgkmcnt(0)
    s_branch K2_main
K2_done:
""")
    diag_store(a, 1, 16, 4)
    a(f"""
K2_exit:
    s_endpgm
""")

def main():
    hdr = open("gather_scatter__edge_featured_mpnn_gatedgcn__graph.s.ref").read().split("\n")
    top = [l for l in hdr if l.startswith(";") and "@launch" not in l and "Override" not in l and "grid=ceil" not in l]
    top = top[:13]
    a = Asm()
    out = "\n".join(top) + "\n"
    out += f"; @launch kernel=prep_kernel grid=({NC+NGB+1},1,1) block=(512,1,1) lds={K1_LDS}\n"
    out += f"; @launch kernel=agg_kernel grid=({NB},1,1) block=(1024,1,1) lds={K2_LDS}\n"
    out += '.amdgcn_target "amdgcn-amd-amdhsa--gfx950"\n.text\n'
    gen_k1(a)
    gen_k2(a)
    out += a.text()
    out += '.section .rodata,"a"\n.p2align 6\n'
    out += kernel_desc("prep_kernel", 160, 100 if DIAG else 64)
    out += ".p2align 6\n"
    out += kernel_desc("agg_kernel", 128, 100 if DIAG else 64)
    fn = [x for x in sys.argv[1:] if not x.startswith("--")]
    open(fn[0] if fn else "gather_scatter__edge_featured_mpnn_gatedgcn__graph.s", "w").write(out)

main()
```
